```python
import torch

def _softmax(x, axis=-1):
    return torch.softmax(x, dim=axis)
def _gelu(x):
    return torch.nn.functional.gelu(x, approximate="tanh")
def _silu(x):
    return torch.nn.functional.silu(x)
def _sigmoid(x):
    return torch.sigmoid(x)
def _layernorm(x, axis=-1, eps=1e-5):
    m = x.mean(dim=axis, keepdim=True)
    v = x.var(dim=axis, keepdim=True, unbiased=False)
    return (x - m) / torch.sqrt(v + eps)
def _scatter_add(tgt, idx, src, axis=0):
    return tgt.clone().index_add_(axis, idx, src)
def _segment_sum(src, seg, n):
    out = torch.zeros((n,) + src.shape[1:], dtype=src.dtype)
    return out.index_add_(0, seg, src)
def _pad(x, pw):
    flat = tuple(v for pair in reversed(pw) for v in pair)
    return torch.nn.functional.pad(x, flat)

kernel_name = 'parallel_sum__ssm_conv_h3__dense_activation_silu__prompt'

def setup_inputs():

    _w = (lambda a: (lambda t: t.to(torch.bfloat16) if t.is_floating_point() else t)(torch.as_tensor(a)))
    def _A_setup():
        B, S, D = 1, 2048, 1024
        ks = 4
        return {
            "q": _w((lambda *s: torch.randn(*s, dtype=torch.bfloat16) * 0.05)(B, S, D)),
            "k": _w((lambda *s: torch.randn(*s, dtype=torch.bfloat16) * 0.2)(B, S, D)),
            "v": _w((lambda *s: torch.randn(*s, dtype=torch.bfloat16) * 0.2)(B, S, D)),
            "shift_k": _w((lambda *s: torch.randn(*s, dtype=torch.bfloat16) * 0.2)(D, ks) * 0.5),
            "ssm_k": _w((lambda *s: torch.randn(*s, dtype=torch.bfloat16) * 0.4)(D, S) * (1.0 / S ** 0.5)),
            "ssm_D": _w((lambda *s: torch.randn(*s, dtype=torch.bfloat16) * 0.2)(D)),
        }
    _A_in = _A_setup()

    def _B_setup():
        B, S, D, F = 1, 2048, 1024, 3584
        return {
            "x": _w((lambda *s: torch.randn(*s, dtype=torch.bfloat16) * 0.05)(B, S, D)),
            "w1": _w((lambda *s: torch.randn(*s, dtype=torch.bfloat16) * 0.8)(D, F) * (D ** -0.5)),
            "w2": _w((lambda *s: torch.randn(*s, dtype=torch.bfloat16) * 0.1)(F, D) * (F ** -0.5)),
        }
    _B_in = _B_setup()

    return {
        "A_q": _A_in["q"],
        "A_k": _A_in["k"],
        "A_v": _A_in["v"],
        "A_shift_k": _A_in["shift_k"],
        "A_ssm_k": _A_in["ssm_k"],
        "A_ssm_D": _A_in["ssm_D"],
        "B_x": _B_in["x"],
        "B_w1": _B_in["w1"],
        "B_w2": _B_in["w2"],
    }

def reference(A_q, A_k, A_v, A_shift_k, A_ssm_k, A_ssm_D, B_x, B_w1, B_w2):
    def _A_ref(q, k, v, shift_k, ssm_k, ssm_D):
        B, S, D = q.shape
        ks = shift_k.shape[-1]
        k_pad = _pad(k, ((0, 0), (ks - 1, 0), (0, 0)))
        k_shift = torch.zeros_like(k)
        for t in range(ks):
            k_shift = k_shift + k_pad[:, t:t + S, :] * shift_k[:, ks - 1 - t][None, None, :]
        kv = k_shift * v
        L = 2 * S
        kv_pad = _pad(kv, ((0, 0), (0, S), (0, 0)))
        kf_pad = _pad(ssm_k, ((0, 0), (0, S)))
        kv_f = (lambda x, axes=(-2,-1): torch.fft.rfft2(x.float(), dim=axes))(kv_pad[:, None, :, :], axes=(1, 2))
        kf_f = (lambda x, axes=(-2,-1): torch.fft.rfft2(x.float(), dim=axes))(kf_pad[:, None, :], axes=(1, 2))
        kf_f = (lambda x, *d: x.permute(*d))(kf_f, 1, 2, 0)
        y_f = kv_f * kf_f[None, :, :, :]
        y = (lambda x, s, axes=(-2,-1): torch.fft.irfft2(x, s=s, dim=axes).to(torch.bfloat16))(y_f, (1, L), axes=(1, 2))[:, 0, :S, :]
        y = y + kv * ssm_D[None, None, :]
        return q * y

    def _B_ref(x, w1, w2):
        h = torch.einsum("bsd,df->bsf", x, w1)
        h = _silu(h)
        out = torch.einsum("bsf,fd->bsd", h, w2)
        return out

    x = A_q
    xn = _layernorm(x, axis=-1)
    return x + _A_ref(xn, A_k, A_v, A_shift_k, A_ssm_k, A_ssm_D) + _B_ref(xn, B_w1, B_w2)
```

```python
HDR = """.amdgcn_target "amdgcn-amd-amdhsa--gfx950"
.text
"""
class A:
    def __init__(self):
        self.l = []
        self.n = 0
    def __call__(self, s):
        for line in s.strip("\n").split("\n"):
            self.l.append("    " + line.strip() if not line.strip().endswith(":") else line.strip())
    def label(self, s): self.l.append(s + ":")
    def uniq(self, p="L"):
        self.n += 1
        return f"{p}_{self.n}"
    def text(self): return "\n".join(self.l) + "\n"

def kernel_begin(name):
    return f""".globl {name}
.p2align 8
.type {name},@function
{name}:
"""
def kd(name, vgpr, sgpr=102, accum=None):
    if accum is None: accum = (vgpr + 3) // 4 * 4
    return f""".amdhsa_kernel {name}
  .amdhsa_next_free_vgpr {vgpr}
  .amdhsa_next_free_sgpr {sgpr}
  .amdhsa_accum_offset {accum}
  .amdhsa_group_segment_fixed_size 0
  .amdhsa_kernarg_size 96
  .amdhsa_user_sgpr_count 2
  .amdhsa_user_sgpr_kernarg_segment_ptr 1
  .amdhsa_system_sgpr_workgroup_id_x 1
.end_amdhsa_kernel
"""
def srd(a, d, base, nbytes):
    a(f"""s_mov_b32 s{d}, s{base}
    s_and_b32 s{d+1}, s{base+1}, 0xffff
    s_mov_b32 s{d+2}, {nbytes}
    s_mov_b32 s{d+3}, 0x20000""")
```

```python
import sys
from asmlib import *

MB = 1 << 20
WS_XN, WS_UB, WS_H, WS_YB, WS_PART, WS_FLAG, WS_TS = 0, 4*MB, 8*MB, 24*MB, 32*MB, 64*MB, 200*MB
SZ_X = 2048*1024*2
SZ_W = 1024*3584*2
SZ_H = 2048*3584*2
SZ_PART = 64*4*3*32768
LOG2E_NEG = "0xbfb8aa3b"

def srd_ws(a, d, wsbase, off, nbytes):
    a(f"""s_add_u32 s{d}, s{wsbase}, {off}
    s_addc_u32 s{d+1}, s{wsbase+1}, 0
    s_and_b32 s{d+1}, s{d+1}, 0xffff
    s_mov_b32 s{d+2}, {nbytes}
    s_mov_b32 s{d+3}, 0x20000""")

def vr(b, n): return f"v[{b}:{b+n-1}]"

def wave_allreduce(a, v, tmp, s0):
    for ctl in ("quad_perm:[1,0,3,2]", "quad_perm:[2,3,0,1]", "row_half_mirror", "row_mirror"):
        a(f"s_nop 1\nv_add_f32_dpp v{v}, v{v}, v{v} {ctl} row_mask:0xf bank_mask:0xf")
    a(f"""s_nop 1
    v_readlane_b32 s{s0}, v{v}, 0
    v_readlane_b32 s{s0+1}, v{v}, 16
    v_readlane_b32 s{s0+2}, v{v}, 32
    v_readlane_b32 s{s0+3}, v{v}, 48
    s_nop 1
    v_mov_b32 v{v}, s{s0}
    v_add_f32 v{v}, s{s0+1}, v{v}
    v_add_f32 v{v}, s{s0+2}, v{v}
    v_add_f32 v{v}, s{s0+3}, v{v}""")

def rnd_bf16(a, dst, src):
    a(f"v_cvt_pk_bf16_f32 v{dst}, v{src}, v{src}\nv_lshlrev_b32 v{dst}, 16, v{dst}")

def gen_prep(a):
    a("""s_cmp_ge_u32 s2, 256
    s_cbranch_scc1 P_end
    s_load_dwordx4 s[4:7], s[0:1], 0
    s_load_dwordx4 s[8:11], s[0:1], 16
    s_load_dwordx2 s[12:13], s[0:1], 88
    v_lshrrev_b32 v1, 6, v0
    v_and_b32 v2, 63, v0
    s_waitcnt lgkmcnt(0)""")
    srd(a, 16, 4, SZ_X); srd(a, 20, 6, SZ_X); srd(a, 24, 8, SZ_X); srd(a, 28, 10, 8192)
    srd_ws(a, 32, 12, WS_XN, SZ_X); srd_ws(a, 36, 12, WS_UB, SZ_X); srd_ws(a, 40, 12, WS_FLAG, 256*128)
    a("""s_lshl_b32 s3, s2, 14          ; b*8 rows*2048
    v_lshlrev_b32 v3, 12, v1            ; w*2 rows
    v_lshl_add_u32 v3, v2, 4, v3
    v_add_u32 v3, s3, v3
    buffer_load_dwordx4 v[16:19], v3, s[16:19], 0 offen
    buffer_load_dwordx4 v[20:23], v3, s[16:19], 0 offen offset:1024
    buffer_load_dwordx4 v[24:27], v3, s[16:19], 0 offen offset:2048
    buffer_load_dwordx4 v[28:31], v3, s[16:19], 0 offen offset:3072
    v_lshlrev_b32 v4, 3, v0
    v_add_u32 v4, s3, v4
    v_subrev_u32 v5, 6144, v4           ; halo
    s_mov_b32 s44, 4096
    s_mov_b32 s45, 8192
    s_mov_b32 s46, 12288
    buffer_load_dwordx2 v[32:33], v5, s[20:23], 0 offen
    buffer_load_dwordx2 v[34:35], v5, s[20:23], 0 offen offset:2048
    buffer_load_dwordx2 v[36:37], v5, s[20:23], s44 offen""")
    so = ["0", "s44", "s45", "s46"]
    for i in range(8):
        a(f"buffer_load_dwordx2 {vr(38+2*i,2)}, v4, s[20:23], {so[i>>1]} offen offset:{(i&1)*2048}")
    for i in range(8):
        a(f"buffer_load_dwordx2 {vr(54+2*i,2)}, v4, s[24:27], {so[i>>1]} offen offset:{(i&1)*2048}")
    a("""v_lshlrev_b32 v6, 5, v0
    buffer_load_dwordx4 v[72:75], v6, s[28:31], 0 offen
    buffer_load_dwordx4 v[76:79], v6, s[28:31], 0 offen offset:16
    s_lshl_b32 s47, s2, 7
    v_mov_b32 v7, 0
    v_cmp_eq_u32 vcc, 0, v0
    s_and_saveexec_b64 s[50:51], vcc
    s_cbranch_execz P_nf
    buffer_store_dword v7, v7, s[40:43], s47 offen
    P_nf:
    s_mov_b64 exec, s[50:51]
    s_waitcnt vmcnt(21)""")
    for row in range(2):
        src = 16 + 8*row
        X = 80
        for j in range(8):
            a(f"v_lshlrev_b32 v{X+2*j}, 16, v{src+j}\nv_and_b32 v{X+2*j+1}, 0xffff0000, v{src+j}")
        a(f"v_add_f32 v8, v{X}, v{X+1}")
        for j in range(2, 16): a(f"v_add_f32 v8, v8, v{X+j}")
        wave_allreduce(a, 8, 9, 52)
        a("v_mul_f32 v8, 0x3a800000, v8")
        a(f"v_sub_f32 v9, v{X}, v8\nv_mul_f32 v10, v9, v9")
        for j in range(1, 16): a(f"v_sub_f32 v9, v{X+j}, v8\nv_fmac_f32 v10, v9, v9")
        wave_allreduce(a, 10, 9, 52)
        a("v_mul_f32 v10, 0x3a800000, v10")
        rnd_bf16(a, 8, 8); rnd_bf16(a, 10, 10)
        a("v_add_f32 v10, 0x3727c5ac, v10"); rnd_bf16(a, 10, 10)
        a("v_sqrt_f32 v10, v10\ns_nop 0"); rnd_bf16(a, 10, 10)
        a("v_rcp_f32 v10, v10\ns_nop 0")
        for j in range(8):
            x0, x1 = X+2*j, X+2*j+1
            a(f"""v_sub_f32 v{x0}, v{x0}, v8
            v_sub_f32 v{x1}, v{x1}, v8
            v_cvt_pk_bf16_f32 v9, v{x0}, v{x1}
            v_lshlrev_b32 v{x0}, 16, v9
            v_and_b32 v{x1}, 0xffff0000, v9
            v_mul_f32 v{x0}, v{x0}, v10
            v_mul_f32 v{x1}, v{x1}, v10
            v_cvt_pk_bf16_f32 v{src+j}, v{x0}, v{x1}""")
        a(f"buffer_store_dwordx4 {vr(src,4)}, v3, s[32:35], 0 offen offset:{row*2048}")
        a(f"buffer_store_dwordx4 {vr(src+4,4)}, v3, s[32:35], 0 offen offset:{row*2048+1024}")
    a("""s_waitcnt vmcnt(4)
    s_sub_u32 s47, 255, s2
    s_lshl_b32 s47, s47, 6
    v_lshlrev_b32 v6, 14, v0""")
    def unp(dst, src, hi):
        if hi: a(f"v_and_b32 v{dst}, 0xffff0000, v{src}")
        else: a(f"v_lshlrev_b32 v{dst}, 16, v{src}")
    for c in range(4):
        KK, SK, T = 80, 92, 96
        for i in range(11): unp(KK+i, 32+2*i+(c>>1), c&1)
        for j in range(4): unp(SK+j, 72+2*c+(j>>1), j&1)
        for i in range(8):
            a(f"""v_mul_f32 v{T+i}, v{SK+3}, v{KK+i}
            v_fmac_f32 v{T+i}, v{SK+2}, v{KK+i+1}
            v_fmac_f32 v{T+i}, v{SK+1}, v{KK+i+2}
            v_fmac_f32 v{T+i}, v{SK+0}, v{KK+i+3}""")
            unp(9, 54+2*i+(c>>1), c&1)
            a(f"v_mul_f32 v{T+i}, v{T+i}, v9")
        O = 104 + 4*c
        for j in range(4): a(f"v_cvt_pk_bf16_f32 v{O+j}, v{T+7-2*j}, v{T+6-2*j}")
        a(f"buffer_store_dwordx4 {vr(O,4)}, v6, s[36:39], s47 offen offset:{16*c}")
    a("P_end:\ns_endpgm")

RS, HO0, HC = 13120, 4608, 4160
def gen_conv(a):
    a("""s_cmp_ge_u32 s2, 256
    s_cbranch_scc1 C_end
    s_load_dwordx4 s[4:7], s[0:1], 32
    s_load_dwordx2 s[12:13], s[0:1], 88
    v_lshrrev_b32 v1, 6, v0
    v_and_b32 v2, 63, v0
    s_nop 0
    v_readfirstlane_b32 s3, v1
    s_waitcnt lgkmcnt(0)""")
    srd(a, 16, 4, SZ_X); srd(a, 20, 6, 2048)
    srd_ws(a, 24, 12, WS_UB, SZ_X); srd_ws(a, 28, 12, WS_YB, SZ_X)
    a(f"""s_mul_i32 s32, s3, {RS}
    s_lshl_b32 s33, s2, 14                 ; G*16384
    s_lshl_b32 s34, s3, 4
    s_add_u32 s34, s34, s33                ; + w*16
    v_lshlrev_b32 v3, 6, v2
    s_lshl_b32 s35, s2, 2
    s_add_u32 s35, s35, s3                 ; channel d
    s_lshl_b32 s36, s35, 12                ; d*4096
    v_lshlrev_b32 v4, 4, v2""")
    for q in range(4):
        a(f"buffer_load_dwordx4 {vr(16+8*q,4)}, v4, s[16:19], s36 offen offset:{q*1024}")
        a(f"buffer_load_dword v{20+8*q}, v4, s[16:19], s36 offen offset:{q*1024+16}")
    a("""s_lshl_b32 s37, s35, 1
    v_mov_b32 v5, 0
    buffer_load_ushort v6, v5, s[20:23], s37 offen""")
    for q in range(4):
        a(f"""s_add_u32 m0, s32, {q*1024}
        s_nop 0
        buffer_load_dwordx4 v3, s[24:27], s34 offen lds
        s_add_u32 s34, s34, 4096""")
    a(f"""v_mov_b32 v8, 0
    v_mov_b32 v9, 0
    v_mov_b32 v10, 0
    v_mov_b32 v11, 0
    v_lshlrev_b32 v7, 3, v2
    v_add_u32 v7, s32, v7
    ds_write_b64 v7, v[8:9] offset:4096
    v_add_u32 v4, s32, v4""")
    for q in range(4):
        b = 16+8*q
        a(f"s_waitcnt vmcnt({11-2*q})")
        a(f"ds_write_b128 v4, {vr(b,4)} offset:{HO0+32+q*1024}")
        for j in range(4): a(f"v_alignbit_b32 v{48+4*q+j}, v{b+j+1}, v{b+j}, 16")
        a(f"ds_write_b128 v4, {vr(48+4*q,4)} offset:{HO0+HC+32+q*1024}")
    a(f"""v_cmp_eq_u32 vcc, 0, v2
    s_and_saveexec_b64 s[40:41], vcc
    ds_write_b128 v4, v[8:11] offset:{HO0}
    ds_write_b128 v4, v[8:11] offset:{HO0+16}
    ds_write_b128 v4, v[8:11] offset:{HO0+HC}
    v_mov_b32 v12, 0
    v_mov_b32 v13, 0
    v_mov_b32 v14, 0
    v_lshlrev_b32 v15, 16, v16
    ds_write_b128 v4, v[12:15] offset:{HO0+HC+16}
    s_mov_b64 exec, s[40:41]""")
    a(f"""v_and_b32 v7, 15, v2
    v_lshrrev_b32 v8, 4, v2
    v_add_u32 v9, 1, v7
    v_and_b32 v9, 1, v9
    v_mul_u32_u24 v10, {HC-2}, v9
    v_lshl_add_u32 v10, v7, 1, v10
    v_lshl_add_u32 v10, v8, 4, v10
    v_add_u32 v10, {HO0+32-30}, v10
    v_add_u32 v10, s32, v10
    v_add_u32 v11, 1024, v10
    v_add_u32 v12, 2048, v10
    v_add_u32 v13, 3072, v10
    v_lshlrev_b32 v14, 5, v7
    v_sub_u32 v14, 480, v14
    v_lshl_add_u32 v14, v8, 4, v14
    v_add_u32 v14, s32, v14""")
    ACC = 16
    FR = [64, 128]
    def reads(fs, rho_off):
        L = []
        for i in range(8):
            h = FR[fs] + 4*i
            o = (i & 1)*128 + rho_off*16
            L.append(f"ds_read2_b32 {vr(h,2)}, v{10+(i>>1)} offset0:{o} offset1:{o+1}")
            L.append(f"ds_read2_b32 {vr(h+2,2)}, v{10+(i>>1)} offset0:{o+2} offset1:{o+3}")
            u = FR[fs] + 32 + 4*i
            L.append(f"ds_read_b128 {vr(u,4)}, v14 offset:{512*(7-i) + 64*rho_off}")
        return L
    def mfmas(fs):
        L = []
        for mu in range(8):
            for nu in range(8-mu):
                i = mu + nu
                L.append(f"v_mfma_f32_16x16x32_bf16 {vr(ACC+4*i,4)}, {vr(FR[fs]+4*mu,4)}, {vr(FR[fs]+32+4*nu,4)}, {vr(ACC+4*i,4)}")
        return L
    a("s_waitcnt vmcnt(0) lgkmcnt(0)")
    a("v_lshlrev_b32 v6, 16, v6")
    for r in reads(0, 0): a(r)
    for i in range(32): a(f"v_mov_b32 v{ACC+i}, 0")
    a("s_mov_b32 s38, 0\nC_loop:")
    for half in range(2):
        a("s_waitcnt lgkmcnt(0)")
        M = mfmas(half); R = reads(1-half, half+1)
        for i, m in enumerate(M):
            a(m)
            if i < len(R): a(R[i])
    a("""v_add_u32 v10, 128, v10
    v_add_u32 v11, 128, v11
    v_add_u32 v12, 128, v12
    v_add_u32 v13, 128, v13
    v_add_u32 v14, 128, v14
    s_add_u32 s38, s38, 1
    s_cmp_lt_u32 s38, 4
    s_cbranch_scc1 C_loop""")
    a(f"""s_waitcnt lgkmcnt(0)
    v_lshlrev_b32 v9, 5, v7
    v_lshl_add_u32 v9, v8, 3, v9           ; 32a + 8g
    v_sub_u32 v10, 504, v9
    v_add_u32 v10, s32, v10
    v_add_u32 v9, s32, v9""")
    for i in range(8): a(f"ds_read_b64 {vr(64+2*i,2)}, v10 offset:{512*(7-i)}")
    a("s_waitcnt lgkmcnt(0)")
    for i in range(8):
        A0 = ACC+4*i; u = 64+2*i
        a(f"""v_and_b32 v11, 0xffff0000, v{u+1}
        v_lshlrev_b32 v12, 16, v{u+1}
        v_and_b32 v13, 0xffff0000, v{u}
        v_lshlrev_b32 v14, 16, v{u}
        v_fmac_f32 v{A0}, v6, v11
        v_fmac_f32 v{A0+1}, v6, v12
        v_fmac_f32 v{A0+2}, v6, v13
        v_fmac_f32 v{A0+3}, v6, v14
        v_cvt_pk_bf16_f32 v{u}, v{A0}, v{A0+1}
        v_cvt_pk_bf16_f32 v{u+1}, v{A0+2}, v{A0+3}
        ds_write_b64 v9, {vr(u,2)} offset:{HO0+512*i}""")
    a(f"""v_lshrrev_b32 v9, 2, v7
    v_mul_u32_u24 v9, {RS}, v9
    v_and_b32 v10, 3, v2
    v_lshl_add_u32 v9, v10, 3, v9
    v_lshl_add_u32 v9, v8, 5, v9
    s_lshl_b32 s38, s3, 10
    v_add_u32 v9, s38, v9
    v_lshlrev_b32 v10, 3, v2
    s_lshl_b32 s38, s3, 12
    s_add_u32 s38, s38, s33
    s_waitcnt lgkmcnt(0)
    s_barrier""")
    for z in range(8): a(f"ds_read_b64_tr_b16 {vr(64+2*z,2)}, v9 offset:{HO0+128*z}")
    for z in range(8):
        a(f"s_waitcnt lgkmcnt({7-z})\nbuffer_store_dwordx2 {vr(64+2*z,2)}, v10, s[28:31], s38 offen offset:{512*z}")
    a("C_end:\ns_endpgm")

G1_ST = 45056
def silu4(a, r, t):
    for j in range(4): a(f"v_mul_f32 v{t+j}, {LOG2E_NEG}, v{r+j}")
    for j in range(4): a(f"v_exp_f32 v{t+j}, v{t+j}")
    for j in range(4): a(f"v_add_f32 v{t+j}, 1.0, v{t+j}")
    for j in range(4): a(f"v_rcp_f32 v{t+j}, v{t+j}")
    for j in range(4): a(f"v_mul_f32 v{r+j}, v{r+j}, v{t+j}")

def gen_g1(a):
    a("""s_cmp_ge_u32 s2, 256
    s_cbranch_scc1 G1_end
    s_load_dwordx2 s[4:5], s[0:1], 56
    s_load_dwordx2 s[12:13], s[0:1], 88
    v_lshrrev_b32 v1, 6, v0
    v_and_b32 v2, 63, v0
    s_nop 0
    v_readfirstlane_b32 s3, v1
    s_and_b32 s30, s2, 7
    s_lshr_b32 s31, s2, 3
    s_and_b32 s32, s30, 1
    s_lshl_b32 s32, s32, 3
    s_and_b32 s33, s31, 7
    s_add_u32 s32, s32, s33              ; i = M tile
    s_lshr_b32 s33, s30, 1
    s_lshl_b32 s33, s33, 2
    s_lshr_b32 s34, s31, 3
    s_add_u32 s33, s33, s34              ; j = F tile
    s_waitcnt lgkmcnt(0)""")
    srd_ws(a, 16, 12, WS_XN, SZ_X); srd(a, 20, 4, SZ_W); srd_ws(a, 24, 12, WS_H, SZ_H)
    a("""s_cmp_lt_u32 s3, 4
    s_cbranch_scc1 G1_comp""")
    a(f"""s_sub_u32 s3, s3, 4
    s_lshl_b32 s35, s3, 3
    v_lshrrev_b32 v3, 3, v2
    v_add_u32 v3, s35, v3
    v_lshrrev_b32 v4, 1, v3
    v_xor_b32 v4, v4, v2
    v_and_b32 v4, 7, v4
    v_lshlrev_b32 v3, 11, v3
    v_lshl_add_u32 v10, v4, 4, v3         ; X voffset (i=0)
    s_lshl_b32 s36, s32, 18
    s_mul_i32 s37, s33, 448
    s_lshl_b32 s35, s3, 6""")
    for i in range(7):
        a(f"""v_add_u32 v3, s35, v2
        v_add_u32 v3, {256*i}, v3
        v_mul_u32_u24 v4, 2341, v3
        v_lshrrev_b32 v4, 16, v4          ; k
        v_mul_u32_u24 v5, 28, v4
        v_sub_u32 v5, v3, v5              ; pos
        v_lshrrev_b32 v6, 2, v4
        v_and_b32 v6, 2, v6
        v_xor_b32 v5, v5, v6
        v_mul_u32_u24 v4, 7168, v4
        v_lshl_add_u32 v{11+i}, v5, 4, v4""")
    a("s_lshl_b32 s38, s3, 10")
    def issue():
        for i in range(4):
            a(f"""s_add_u32 m0, s38, {4096*i}
            s_add_u32 s39, s36, {65536*i}
            buffer_load_dwordx4 v10, s[16:19], s39 offen lds""")
        for i in range(7):
            a(f"""s_add_u32 m0, s38, {16384+4096*i}
            s_nop 0
            buffer_load_dwordx4 v{11+i}, s[20:23], s37 offen lds""")
        a(f"""s_add_u32 s36, s36, 128
        s_add_u32 s37, s37, {64*7168}
        s_add_u32 s38, s38, {G1_ST}
        s_cmp_ge_u32 s38, {3*G1_ST}
        s_cbranch_scc0 {{skip}}
        s_sub_u32 s38, s38, {3*G1_ST}
        {{skip}}:""".replace("{skip}", a.uniq("G1s")))
    a("s_mov_b32 s40, 0\nG1_lp:")
    issue()
    a("""s_add_u32 s40, s40, 1
    s_cmp_lt_u32 s40, 3
    s_cbranch_scc1 G1_lp
    s_waitcnt vmcnt(22)
    s_barrier
    s_waitcnt vmcnt(11)
    s_barrier
    G1_ll:""")
    issue()
    a("""s_waitcnt vmcnt(11)
    s_barrier
    s_add_u32 s40, s40, 1
    s_cmp_lt_u32 s40, 16
    s_cbranch_scc1 G1_ll
    s_waitcnt vmcnt(0)
    s_barrier
    s_barrier
    s_endpgm""")
    ACC = 16
    FR = [128, 172]
    a(f"""G1_comp:
    s_lshr_b32 s35, s3, 1                ; wm
    s_and_b32 s36, s3, 1                 ; wf
    v_and_b32 v3, 15, v2                 ; r
    v_lshrrev_b32 v4, 4, v2              ; g
    v_lshrrev_b32 v5, 1, v3
    v_xor_b32 v5, v5, v4
    v_xor_b32 v6, 4, v5
    s_lshl_b32 s37, s35, 13
    v_lshlrev_b32 v7, 7, v3
    v_add_u32 v7, s37, v7
    v_lshl_add_u32 v10, v5, 4, v7
    v_lshl_add_u32 v11, v6, 4, v7
    v_lshrrev_b32 v5, 2, v3
    v_lshl_add_u32 v5, v4, 3, v5         ; 8g + r4
    v_mul_u32_u24 v5, 448, v5
    v_and_b32 v6, 3, v2
    v_lshl_add_u32 v5, v6, 3, v5
    s_mul_i32 s37, s36, 224
    s_add_u32 s37, s37, 16384
    v_add_u32 v5, s37, v5
    v_and_b32 v6, 1, v4
    v_lshlrev_b32 v6, 5, v6
    v_add_u32 v12, v5, v6
    v_sub_u32 v13, v5, v6
    s_cmp_eq_u32 s36, 0
    s_cbranch_scc1 G1_nsw
    v_mov_b32 v5, v12
    v_mov_b32 v12, v13
    v_mov_b32 v13, v5
    G1_nsw:""")
    def reads(fs, ks):
        L = []
        for mt in range(4):
            L.append(f"ds_read_b128 {vr(FR[fs]+28+4*mt,4)}, v{10+ks} offset:{2048*mt}")
        W = []
        for ft in range(7):
            for h in range(2):
                W.append(f"ds_read_b64_tr_b16 {vr(FR[fs]+4*ft+2*h,2)}, v{12+(ft&1)} offset:{32*ft+(32*ks+4*h)*448}")
        return W[:2] + L + W[2:]
    def mfmas(fs):
        return [f"v_mfma_f32_16x16x32_bf16 {vr(ACC+16*ft+4*mt,4)}, {vr(FR[fs]+4*ft,4)}, {vr(FR[fs]+28+4*mt,4)}, {vr(ACC+16*ft+4*mt,4)}"
                for ft in range(7) for mt in range(4)]
    for i in range(112): a(f"v_mov_b32 v{ACC+i}, 0")
    a(f"s_mov_b32 s42, {G1_ST}\ns_mov_b32 s38, 0\ns_mov_b32 s40, 0\ns_barrier")
    for r in reads(0, 0): a(r)
    a("G1_cl:\ns_waitcnt lgkmcnt(0)")
    M, R = mfmas(0), reads(1, 1)
    for i, m in enumerate(M):
        a(m)
        if i < len(R): a(R[i])
        if i == 20:
            a(f"""s_add_u32 s38, s38, {G1_ST}
            s_cmp_ge_u32 s38, {3*G1_ST}
            s_cselect_b32 s39, {-2*G1_ST}, s42""")
        if i == 21: a("s_cselect_b32 s38, 0, s38")
        if 22 <= i < 26: a(f"v_add_u32 v{10+i-22}, s39, v{10+i-22}")
    a("s_waitcnt lgkmcnt(0)\ns_barrier")
    M, R = mfmas(1), reads(0, 0)
    for i, m in enumerate(M):
        a(m)
        if i < len(R): a(R[i])
    a("""s_add_u32 s40, s40, 1
    s_cmp_lt_u32 s40, 16
    s_cbranch_scc1 G1_cl""")
    a(f"""s_lshl_b32 s37, s32, 3
    s_lshl_b32 s38, s35, 2
    s_add_u32 s37, s37, s38
    s_mul_i32 s37, s37, 112
    s_mul_i32 s38, s33, 7
    s_add_u32 s37, s37, s38
    s_lshl_b32 s37, s37, 10
    v_lshlrev_b32 v3, 4, v2
    s_lshl_b32 s38, s36, 3
    v_add_u32 v4, s38, v3
    v_add_u32 v4, 3072, v4
    s_lshl_b32 s38, s36, 12
    v_add_u32 v3, s38, v3
    s_waitcnt lgkmcnt(0)
    s_cmp_eq_u32 s36, 0
    s_cbranch_scc0 G1_e1""")
    for wf in range(2):
        if wf == 1: a("G1_e1:")
        k = 0
        for mt in range(4):
            pairs = [(0,1),(2,3),(4,5)] if wf == 0 else [(1,2),(3,4),(5,6)]
            single = 6 if wf == 0 else 0
            for p, (f0, f1) in enumerate(pairs):
                O = 128 + 8*(k % 4); k += 1
                r0, r1 = ACC+16*f0+4*mt, ACC+16*f1+4*mt
                silu4(a, r0, 200); silu4(a, r1, 204)
                a(f"""v_cvt_pk_bf16_f32 v{O}, v{r0}, v{r0+1}
                v_cvt_pk_bf16_f32 v{O+1}, v{r0+2}, v{r0+3}
                v_cvt_pk_bf16_f32 v{O+2}, v{r1}, v{r1+1}
                v_cvt_pk_bf16_f32 v{O+3}, v{r1+2}, v{r1+3}
                buffer_store_dwordx4 {vr(O,4)}, v3, s[24:27], s37 offen offset:{1024*p}""")
            O = 128 + 8*(k % 4); k += 1
            r0 = ACC+16*single+4*mt
            silu4(a, r0, 200)
            a(f"""v_cvt_pk_bf16_f32 v{O}, v{r0}, v{r0+1}
            v_cvt_pk_bf16_f32 v{O+1}, v{r0+2}, v{r0+3}
            buffer_store_dwordx2 {vr(O,2)}, v4, s[24:27], s37 offen
            s_add_u32 s37, s37, {112*1024}""")
        a("s_endpgm")
    a("G1_end:\ns_endpgm")

G2_ST = 49152
def gen_g2(a):
    a("""s_cmp_ge_u32 s2, 256
    s_cbranch_scc1 G2_end
    s_load_dwordx2 s[4:5], s[0:1], 0
    s_load_dwordx4 s[8:11], s[0:1], 64
    s_load_dwordx2 s[12:13], s[0:1], 88
    v_lshrrev_b32 v1, 6, v0
    v_and_b32 v2, 63, v0
    s_nop 0
    v_readfirstlane_b32 s3, v1
    s_and_b32 s30, s2, 7
    s_lshr_b32 s31, s2, 3
    s_and_b32 s34, s30, 3                ; q
    s_lshr_b32 s32, s30, 2
    s_lshl_b32 s32, s32, 2
    s_and_b32 s33, s31, 3
    s_add_u32 s32, s32, s33
    s_lshr_b32 s33, s31, 2
    s_lshl_b32 s41, s32, 3
    s_add_u32 s41, s41, s33
    s_waitcnt lgkmcnt(0)""")
    srd_ws(a, 16, 12, WS_H, SZ_H); srd(a, 20, 8, SZ_W); srd_ws(a, 24, 12, WS_FLAG, 256*128)
    a("""s_cmp_lt_u32 s3, 4
    s_cbranch_scc1 G2_comp""")
    a(f"""s_sub_u32 s3, s3, 4
    v_lshlrev_b32 v10, 4, v2
    s_lshl_b32 s35, s32, 4
    s_lshr_b32 s36, s3, 1
    s_add_u32 s35, s35, s36
    s_mul_i32 s35, s35, 112
    s_mul_i32 s36, s34, 28
    s_add_u32 s35, s35, s36
    s_and_b32 s36, s3, 1
    s_add_u32 s35, s35, s36
    s_lshl_b32 s36, s35, 10""")
    for i in range(8):
        a(f"""s_xor_b32 s35, s34, {i}
        s_mul_i32 s{44+i}, s35, {2*112*1024}""")
    a(f"""s_lshl_b32 s35, s3, 2
    v_lshrrev_b32 v3, 4, v2
    v_add_u32 v3, s35, v3                ; k = 4lw + (l>>4)
    v_and_b32 v4, 7, v3
    v_lshlrev_b32 v4, 1, v4
    v_and_b32 v5, 15, v2
    v_xor_b32 v4, v4, v5
    v_lshlrev_b32 v3, 11, v3
    v_lshl_add_u32 v11, v4, 4, v3
    s_mul_i32 s37, s34, {896*2048}
    s_lshl_b32 s35, s33, 8
    s_add_u32 s37, s37, s35
    s_lshl_b32 s38, s3, 10""")
    def issue():
        for i in range(8):
            a(f"""s_add_u32 m0, s38, {4096*i}
            s_add_u32 s39, s36, s{44+i}
            buffer_load_dwordx4 v10, s[16:19], s39 offen lds""")
        for i in range(4):
            a(f"""s_add_u32 m0, s38, {32768+4096*i}
            s_add_u32 s39, s37, {16*2048*i}
            buffer_load_dwordx4 v11, s[20:23], s39 offen lds""")
        a(f"""s_add_u32 s36, s36, 2048
        s_add_u32 s37, s37, {64*2048}
        s_add_u32 s38, s38, {G2_ST}
        s_cmp_ge_u32 s38, {3*G2_ST}
        s_cbranch_scc0 {{skip}}
        s_sub_u32 s38, s38, {3*G2_ST}
        {{skip}}:""".replace("{skip}", a.uniq("G2s")))
    a("s_mov_b32 s40, 0\nG2_lp:")
    issue()
    a("""s_add_u32 s40, s40, 1
    s_cmp_lt_u32 s40, 3
    s_cbranch_scc1 G2_lp
    s_waitcnt vmcnt(24)
    s_barrier
    s_waitcnt vmcnt(12)
    s_barrier
    G2_ll:""")
    issue()
    a("""s_waitcnt vmcnt(12)
    s_barrier
    s_add_u32 s40, s40, 1
    s_cmp_lt_u32 s40, 14
    s_cbranch_scc1 G2_ll
    s_waitcnt vmcnt(0)
    s_barrier
    s_barrier
    s_barrier
    s_cmp_lg_u32 s3, 0
    s_cbranch_scc1 G2_lx
    s_lshl_b32 s35, s41, 9
    v_xor_b32 v3, s34, v2
    v_lshlrev_b32 v3, 7, v3
    v_mov_b32 v4, 1
    v_cmp_eq_u32 vcc, 0, v2
    s_and_saveexec_b64 s[42:43], vcc
    buffer_store_dword v4, v3, s[24:27], s35 offen sc1
    s_mov_b64 exec, 14
    s_mov_b32 s40, 0
    G2_poll:
    buffer_load_dword v5, v3, s[24:27], s35 offen sc1
    s_waitcnt vmcnt(0)
    v_cmp_ne_u32 vcc, 1, v5
    s_cbranch_vccz G2_lx
    s_sleep 1
    s_add_u32 s40, s40, 1
    s_cmp_lt_u32 s40, 0x100000
    s_cbranch_scc1 G2_poll
    G2_lx:
    s_barrier
    s_endpgm""")
    ACC = 16
    FR = [144, 192]
    a(f"""G2_comp:
    s_lshr_b32 s35, s3, 1                ; wm
    s_and_b32 s36, s3, 1                 ; wn
    s_lshl_b32 s37, s35, 14
    v_lshlrev_b32 v10, 4, v2
    v_add_u32 v10, s37, v10
    v_lshrrev_b32 v3, 2, v2              ; 4g + r
    v_and_b32 v4, 7, v3                  ; z
    s_lshl_b32 s37, s36, 2
    v_xor_b32 v4, s37, v4
    v_lshlrev_b32 v3, 8, v3
    v_and_b32 v5, 3, v2
    v_lshl_add_u32 v3, v5, 3, v3
    v_add_u32 v3, 32768, v3""")
    for n in range(4):
        a(f"v_xor_b32 v5, {n}, v4\nv_lshl_add_u32 v{11+n}, v5, 5, v3")
    def reads(fs, uu):
        W = [f"ds_read_b64_tr_b16 {vr(FR[fs]+4*n+2*h,2)}, v{11+n} offset:{(32*uu+16*h)*256}" for n in range(4) for h in range(2)]
        L = [f"ds_read_b128 {vr(FR[fs]+16+4*mt,4)}, v10 offset:{2048*mt+1024*uu}" for mt in range(8)]
        return [L[0]] + W + L[1:]
    def mfmas(fs):
        return [f"v_mfma_f32_16x16x32_bf16 {vr(ACC+16*mt+4*n,4)}, {vr(FR[fs]+4*n,4)}, {vr(FR[fs]+16+4*mt,4)}, {vr(ACC+16*mt+4*n,4)}"
                for mt in range(8) for n in range(4)]
    for i in range(128): a(f"v_mov_b32 v{ACC+i}, 0")
    a(f"s_mov_b32 s42, {G2_ST}\ns_mov_b32 s38, 0\ns_mov_b32 s40, 0\ns_barrier")
    for r in reads(0, 0): a(r)
    a("G2_cl:\ns_waitcnt lgkmcnt(0)")
    M, R = mfmas(0), reads(1, 1)
    for i, m in enumerate(M):
        a(m)
        if i < len(R): a(R[i])
        if i == 20:
            a(f"""s_add_u32 s38, s38, {G2_ST}
            s_cmp_ge_u32 s38, {3*G2_ST}
            s_cselect_b32 s39, {-2*G2_ST}, s42""")
        if i == 21: a("s_cselect_b32 s38, 0, s38")
        if 22 <= i < 27: a(f"v_add_u32 v{10+i-22}, s39, v{10+i-22}")
    a("s_waitcnt lgkmcnt(0)\ns_barrier")
    M, R = mfmas(1), reads(0, 0)
    for i, m in enumerate(M):
        a(m)
        if i < len(R): a(R[i])
    a("""s_add_u32 s40, s40, 1
    s_cmp_lt_u32 s40, 14
    s_cbranch_scc1 G2_cl""")
    srd_ws(a, 16, 12, WS_PART, SZ_PART)
    a("""v_lshlrev_b32 v3, 4, v2
    s_lshl_b32 s37, s3, 13
    v_add_u32 v3, s37, v3                ; w*8192 + lane*16
    s_waitcnt lgkmcnt(0)""")
    for p in range(1, 4):
        a(f"""s_xor_b32 s37, s34, {p}
        s_lshl_b32 s38, s41, 2
        s_add_u32 s37, s37, s38
        s_mul_i32 s37, s37, 3
        s_add_u32 s37, s37, {p-1}
        s_lshl_b32 s37, s37, 15
        s_add_u32 s38, s37, 4096""")
        for idx in range(8):
            r = ACC + 32*p + 4*idx
            a(f"buffer_store_dwordx4 {vr(r,4)}, v3, s[16:19], s{37+(idx>>2)} offen offset:{1024*(idx&3)} sc1")
    srd(a, 20, 4, SZ_X); srd_ws(a, 24, 12, WS_XN, SZ_X); srd_ws(a, 28, 12, WS_YB, SZ_X); srd(a, 44, 10, SZ_X)
    a("""s_lshl_b32 s37, s32, 8
    s_lshl_b32 s38, s35, 7
    s_add_u32 s37, s37, s38
    s_lshl_b32 s38, s34, 5
    s_add_u32 s37, s37, s38              ; row0
    s_lshl_b32 s38, s33, 7
    s_lshl_b32 s39, s36, 6
    s_add_u32 s38, s38, s39              ; col0
    v_and_b32 v4, 15, v2
    v_lshrrev_b32 v5, 4, v2
    v_add_u32 v4, s37, v4                ; row
    v_lshlrev_b32 v6, 11, v4
    v_lshl_add_u32 v6, v5, 3, v6
    s_lshl_b32 s39, s38, 1
    v_add_u32 v6, s39, v6
    v_add_u32 v7, 32768, v6              ; mt'=1
    v_lshlrev_b32 v8, 14, v5
    v_lshl_add_u32 v8, v4, 3, v8
    s_lshl_b32 s39, s38, 12
    v_add_u32 v8, s39, v8
    s_mov_b32 s48, 65536
    s_mov_b32 s49, 131072
    s_mov_b32 s50, 196608""")
    XR, NR, YR = 144, 160, 176
    so = ["0", "s48", "s49", "s50"]
    for m in range(2):
        for n in range(4):
            i = 4*m+n
            a(f"buffer_load_dwordx2 {vr(XR+2*i,2)}, v{6+m}, s[20:23], 0 offen offset:{32*n}")
            a(f"buffer_load_dwordx2 {vr(NR+2*i,2)}, v{6+m}, s[24:27], 0 offen offset:{32*n}")
            a(f"buffer_load_dwordx2 {vr(YR+2*i,2)}, v8, s[28:31], {so[n]} offen offset:{128*m}")
    a("""s_waitcnt vmcnt(0)
    s_barrier
    s_barrier
    s_lshl_b32 s38, s41, 2
    s_add_u32 s37, s34, s38
    s_mul_i32 s37, s37, 3
    s_lshl_b32 s37, s37, 15""")
    for p in range(1, 4):
        a("s_add_u32 s38, s37, 4096")
        for idx in range(8):
            r = ACC + 32*p + 4*idx
            a(f"buffer_load_dwordx4 {vr(r,4)}, v3, s[16:19], s{37+(idx>>2)} offen offset:{1024*(idx&3)} sc1")
        a("s_add_u32 s37, s37, 32768")
    a("s_waitcnt vmcnt(0)")
    for i in range(8):
        m, n = i >> 2, i & 3
        r = ACC + 4*i
        for j in range(4):
            a(f"v_add_f32 v{r+j}, v{r+j}, v{r+32+j}\nv_add_f32 v{r+64+j}, v{r+64+j}, v{r+96+j}\nv_add_f32 v{r+j}, v{r+j}, v{r+64+j}")
        for j in range(4):
            for (dst, src) in ((200, XR), (201, NR), (202, YR)):
                s = src + 2*i + (j >> 1)
                if j & 1: a(f"v_and_b32 v{dst}, 0xffff0000, v{s}")
                else: a(f"v_lshlrev_b32 v{dst}, 16, v{s}")
            a(f"v_fmac_f32 v200, v201, v202\nv_add_f32 v{r+j}, v{r+j}, v200")
        a(f"""v_cvt_pk_bf16_f32 v{r}, v{r}, v{r+1}
        v_cvt_pk_bf16_f32 v{r+1}, v{r+2}, v{r+3}
        buffer_store_dwordx2 {vr(r,2)}, v{6+m}, s[44:47], 0 offen offset:{32*n}""")
    a("G2_end:\ns_endpgm")

def build():
    ks = [("prep_kernel", gen_prep, 256, 0, 128), ("g1_kernel", gen_g1, 512, 3*G1_ST, 256),
          ("conv_kernel", gen_conv, 256, 4*RS, 192), ("g2_kernel", gen_g2, 512, 3*G2_ST, 256)]
    head = "".join(f"; @launch kernel={n} grid=(256,1,1) block=({b},1,1) lds={l}\n" for n, _, b, l, _ in ks)
    txt = head + HDR
    a = A()
    for n, g, b, l, v in ks:
        a.l.append(kernel_begin(n).rstrip())
        g(a)
    txt += a.text() + '.section .rodata,"a"\n'
    for n, g, b, l, v in ks: txt += ".p2align 6\n" + kd(n, v)
    return txt
if __name__ == "__main__":
    out = sys.argv[1] if len(sys.argv) > 1 else "v1.s"
    open(out, "w").write(build())
```

```python
import sys
from asmlib import *
base = open("v1.s").read()
def add(name, body, grid, block):
    head, rest = base.split(".amdgcn_target", 1)
    head = f"; @launch kernel=probe_kernel grid=({grid},1,1) block=({block},1,1) lds=0\n" + head
    code, rod = rest.split('.section .rodata,"a"', 1)
    a = A(); a(body)
    code += kernel_begin("probe_kernel") + a.text()
    rod += ".p2align 6\n" + kd("probe_kernel", 64)
    open(name, "w").write(head + ".amdgcn_target" + code + '.section .rodata,"a"' + rod)
def lat(karg, size, off0, n, stride):
    return f"""s_cmp_ge_u32 s2, 1
    s_cbranch_scc1 PR_end
    s_load_dwordx2 s[4:5], s[0:1], {karg}
    s_waitcnt lgkmcnt(0)
    s_mov_b32 s8, s4
    s_and_b32 s9, s5, 0xffff
    s_mov_b32 s10, {size}
    s_mov_b32 s11, 0x20000
    v_mov_b32 v1, 0
    s_mov_b32 s12, {off0}
    s_mov_b32 s13, 0
    s_mov_b64 exec, 1
    PR_l:
    buffer_load_dword v2, v1, s[8:11], s12 offen
    s_waitcnt vmcnt(0)
    s_add_u32 s12, s12, {stride}
    s_add_u32 s13, s13, 1
    s_cmp_lt_u32 s13, {n}
    s_cbranch_scc1 PR_l
    PR_end:
    s_endpgm"""
def bw(off0, pol):
    ld = "\n".join(f"buffer_load_dwordx4 v[{4+4*i}:{7+4*i}], v1, s[8:11], s12 offen {pol}\ns_add_u32 s12, s12, 4096" for i in range(8))
    return f"""s_cmp_ge_u32 s2, 256
    s_cbranch_scc1 PR_end
    s_load_dwordx2 s[4:5], s[0:1], 88
    s_waitcnt lgkmcnt(0)
    s_mov_b32 s8, s4
    s_and_b32 s9, s5, 0xffff
    s_mov_b32 s10, 268435456
    s_mov_b32 s11, 0x20000
    v_lshlrev_b32 v1, 4, v0
    s_lshl_b32 s12, s2, 18
    s_add_u32 s12, s12, {off0}
    s_mov_b32 s13, 0
    PR_l:
    {ld}
    s_add_u32 s13, s13, 1
    s_cmp_lt_u32 s13, 8
    s_cbranch_scc1 PR_l
    s_waitcnt vmcnt(0)
    PR_end:
    s_endpgm"""
add("p0.s", "s_endpgm", 1, 64)
add("p1.s", lat(48, 4<<20, 0, 200, 16512), 1, 64)
add("p2.s", lat(88, 256<<20, 100<<20, 200, 16512), 1, 64)
add("p3.s", bw(128<<20, ""), 256, 256)
add("p4.s", bw(128<<20, "nt"), 256, 256)
add("p5.s", lat(88, 256<<20, 250<<20, 200, 16512), 1, 64)
```

```python
import re, sys
txt = open(sys.argv[1]).read(); sel = int(sys.argv[3])
out = []; region = None
for line in txt.split("\n"):
    if re.match(r"^\w+_kernel:", line):
        out.append(line)
        out.append("    s_memrealtime s[96:97]\n    s_memtime s[90:91]\n    v_readfirstlane_b32 s100, v0\n    s_mov_b32 s101, s2")
        continue
    if line.startswith("C_start"): region = "C"
    if line.startswith("K_end"): region = None
    m = re.match(r"^\s*; STAMP (\d+)", line)
    if m:
        n = int(m.group(1)); out.append(f"    s_memtime s[{64+2*n}:{65+2*n}]"); continue
    if region == "C" and line.strip() == "s_endpgm":
        mv = "\n".join(f"    s_sub_u32 s{64+2*i}, s{64+2*i}, s90\n    v_mov_b32 v{8+i}, s{64+2*i}" for i in range(12))
        out.append(f"""    s_waitcnt vmcnt(0) lgkmcnt(0)
    s_memrealtime s[94:95]
    s_memtime s[88:89]
    s_cmp_lg_u32 s101, {sel}
    s_cbranch_scc1 DS_e
    s_cmp_lg_u32 s100, 0
    s_cbranch_scc1 DS_e
    s_mov_b64 exec, 1
    s_waitcnt lgkmcnt(0)
    s_sub_u32 s94, s94, s96
    s_sub_u32 s88, s88, s90
    v_mov_b32 v6, s94
    v_mov_b32 v7, s88
{mv}
    s_mov_b32 s92, s28
    s_and_b32 s93, s29, 0xffff
    s_mov_b32 s94, 256
    s_mov_b32 s95, 0x20000
    v_mov_b32 v2, 0
    buffer_store_dwordx2 v[6:7], v2, s[92:95], 0 offen offset:8
    buffer_store_dwordx4 v[8:11], v2, s[92:95], 0 offen offset:16
    buffer_store_dwordx4 v[12:15], v2, s[92:95], 0 offen offset:32
    buffer_store_dwordx4 v[16:19], v2, s[92:95], 0 offen offset:48
DS_e:""")
    out.append(line)
open(sys.argv[2], "w").write("\n".join(out))
```
